```python
import torch

def _softmax(x, axis=-1):
    return torch.softmax(x, dim=axis)

def _gelu(x):
    return torch.nn.functional.gelu(x, approximate='tanh')

def _silu(x):
    return torch.nn.functional.silu(x)

def _sigmoid(x):
    return torch.sigmoid(x)

def _layernorm(x, axis=-1, eps=1e-05):
    m = x.mean(dim=axis, keepdim=True)
    v = x.var(dim=axis, keepdim=True, unbiased=False)
    return (x - m) / torch.sqrt(v + eps)

def _scatter_add(tgt, idx, src, axis=0):
    return tgt.clone().index_add_(axis, idx, src)

def _segment_sum(src, seg, n):
    out = torch.zeros((n,) + src.shape[1:], dtype=src.dtype)
    return out.index_add_(0, seg, src)

def _pad(x, pw):
    flat = tuple((v for pair in reversed(pw) for v in pair))
    return torch.nn.functional.pad(x, flat)
kernel_name = 'sequential_preLN__spectral_fnet__mixer_gmlp__prompt'

def setup_inputs():

    _w = lambda a: (lambda t: t.to(torch.bfloat16) if t.is_floating_point() else t)(torch.as_tensor(a))

    def _A_setup():
        B, S, D = (1, 2048, 512)
        ns = torch.arange(S)[:, None] * torch.arange(S)[None, :]
        nd = torch.arange(D)[:, None] * torch.arange(D)[None, :]
        Ws_re = torch.cos(-2.0 * torch.pi * ns / S).to(float)
        Ws_im = torch.sin(-2.0 * torch.pi * ns / S).to(float)
        Wd_re = torch.cos(-2.0 * torch.pi * nd / D).to(float)
        Wd_im = torch.sin(-2.0 * torch.pi * nd / D).to(float)
        return {'x': _w((lambda *s: torch.randn(*s, dtype=torch.bfloat16) * 0.05)(B, S, D)), 'dft_seq_re': _w(Ws_re), 'dft_seq_im': _w(Ws_im), 'dft_hid_re': _w(Wd_re), 'dft_hid_im': _w(Wd_im)}
    _A_in = _A_setup()

    def _B_setup():
        B, S, D, F = (1, 2048, 512, 1376)
        Fh = F // 2
        return {'x': _w((lambda *s: torch.randn(*s, dtype=torch.bfloat16) * 0.05)(B, S, D)), 'w_in': _w((lambda *s: torch.randn(*s, dtype=torch.bfloat16) * 1.6)(D, 2 * Fh)), 'w_sp': _w(0.01 * (lambda *s: torch.randn(*s, dtype=torch.bfloat16) * 1.6)(S, S)), 'b_sp': _w(1.0 + 0.01 * (lambda *s: torch.randn(*s, dtype=torch.bfloat16) * 0.8)(S)), 'w_out': _w((lambda *s: torch.randn(*s, dtype=torch.bfloat16) * 0.8)(Fh, D))}
    _B_in = _B_setup()
    return {'A_x': _A_in['x'], 'A_dft_seq_re': _A_in['dft_seq_re'], 'A_dft_seq_im': _A_in['dft_seq_im'], 'A_dft_hid_re': _A_in['dft_hid_re'], 'A_dft_hid_im': _A_in['dft_hid_im'], 'B_x': _B_in['x'], 'B_w_in': _B_in['w_in'], 'B_w_sp': _B_in['w_sp'], 'B_b_sp': _B_in['b_sp'], 'B_w_out': _B_in['w_out']}

def reference(A_x, A_dft_seq_re, A_dft_seq_im, A_dft_hid_re, A_dft_hid_im, B_x, B_w_in, B_w_sp, B_b_sp, B_w_out):

    def _A_ref(x, dft_seq_re, dft_seq_im, dft_hid_re, dft_hid_im):
        a = torch.einsum('bsd,ed->bse', x, dft_hid_re)
        b = torch.einsum('bsd,ed->bse', x, dft_hid_im)
        y = torch.einsum('ts,bse->bte', dft_seq_re, a) - torch.einsum('ts,bse->bte', dft_seq_im, b)
        return y

    def _B_ref(x, w_in, w_sp, b_sp, w_out):
        B, S, D = x.shape
        F = w_in.shape[-1]
        Fh = F // 2
        z = _gelu(torch.einsum('bsd,df->bsf', x, w_in))
        z1 = z[..., :Fh].clone()
        z2 = _layernorm(z[..., Fh:], axis=-1)
        g = torch.einsum('ts,bsf->btf', w_sp, z2) + b_sp[None, :, None]
        return torch.einsum('bsf,fd->bsd', z1 * g, w_out)
    x = A_x
    h = x + _A_ref(_layernorm(x, axis=-1), A_dft_seq_re, A_dft_seq_im, A_dft_hid_re, A_dft_hid_im)
    h2 = h + _B_ref(_layernorm(h, axis=-1), B_w_in, B_w_sp, B_b_sp, B_w_out)
    return h2
```

```python
import re

REG = re.compile(r'^(-?)(?:abs\()?([vas])(?:\[(\d+):(\d+)\]|(\d+))\)?$')
TRANS = ('v_exp_f32', 'v_log_f32', 'v_rcp_f32', 'v_rsq_f32', 'v_sqrt_f32', 'v_sin_f32', 'v_cos_f32')

def regs(tok):
    tok = tok.strip()
    if tok == 'vcc': return [('s', 106), ('s', 107)]
    if tok == 'exec': return [('s', 126), ('s', 127)]
    if tok == 'm0': return [('s', 124)]
    m = REG.match(tok)
    if not m: return []
    f = m.group(2)
    if m.group(3) is not None: return [(f, i) for i in range(int(m.group(3)), int(m.group(4)) + 1)]
    return [(f, int(m.group(5)))]

class Ins:
    def __init__(self, text, tag=None):
        self.text = text.strip(); self.tag = tag
        t = self.text.split(';')[0].strip()
        self.label = t.endswith(':')
        self.pseudo = t.startswith('@')
        parts = t.split(None, 1)
        self.op = parts[0] if parts else ''
        rest = parts[1] if len(parts) > 1 else ''
        ops = [o.strip() for o in re.split(r',(?![^\[]*\])', rest)] if rest else []
        self.mods = ''
        if ops:
            sp = ops[-1].split(None, 1)
            ops[-1] = sp[0]
            if len(sp) > 1: self.mods = sp[1]
        self.ops = ops
        op = self.op
        self.mfma = op.startswith('v_mfma')
        self.valu = op.startswith('v_') and not self.mfma
        self.trans = op.replace('_e32', '').replace('_e64', '') in TRANS
        self.ds = op.startswith('ds_')
        self.vmem = op.startswith('buffer_') or op.startswith('global_')
        self.smem = op.startswith('s_load') or op.startswith('s_memtime') or op.startswith('s_memrealtime')
        self.salu = op.startswith('s_') and not self.smem
        self.dma = self.vmem and re.search(r'\blds\b', self.mods) is not None
        self.dpp = 'row_' in self.mods or 'quad_perm' in self.mods
        R = lambda i: regs(ops[i]) if i < len(ops) else []
        allr = lambda a: [r for i in range(a, len(ops)) for r in R(i)]
        d, s = [], []
        if self.label or self.pseudo or not op: pass
        elif self.mfma:
            d = R(0); s = allr(1); self.A = R(1); self.B = R(2); self.C = R(3)
        elif self.valu:
            d = R(0); s = allr(1)
            if 'swap' in op: d = R(0) + R(1); s = R(0) + R(1)
            if op.startswith(('v_fmac', 'v_dot2c', 'v_writelane')) or self.dpp: s = s + R(0)
            if op.startswith(('v_add_co', 'v_addc_co', 'v_sub_co')): d = R(0) + R(1); s = allr(2)
        elif self.ds:
            if op.startswith('ds_read') or op.startswith('ds_bperm') or op.startswith('ds_swiz'):
                d = R(0); s = allr(1)
                if 'd16' in op: s = s + R(0)
            else: s = allr(0)
        elif self.vmem:
            if 'wbl2' in op or '_inv' in op: pass
            elif self.dma or 'store' in op: s = allr(0)
            else:
                d = R(0); s = allr(1)
                if 'd16' in op: s = s + R(0)
            if self.dma: s = s + [('s', 124)]
        elif self.smem: d = R(0); s = allr(1)
        elif self.salu:
            if op.startswith(('s_cmp', 's_cbranch', 's_branch', 's_waitcnt', 's_nop', 's_barrier', 's_sleep', 's_endpgm', 's_setprio', 's_bitcmp')): s = allr(0)
            else:
                d = R(0); s = allr(1)
                if 'saveexec' in op: d = d + regs('exec')
        self.d = set(d); self.s = set(s)
        self.wide_store = self.vmem and 'store' in op and ('x4' in op or 'x3' in op)
        if self.wide_store: self.data = set(R(0)) if op.startswith('buffer_') else set(R(1))

def states(i):
    if i.label or i.pseudo or not i.op: return 0
    if i.op == 's_nop': return int(i.ops[0]) + 1
    return 1

def need(p, c):
    n = 0
    pv = {r for r in p.d if r[0] in 'va'}; ps = {r for r in p.d if r[0] == 's'}
    if p.valu:
        if c.mfma and pv & c.s: n = max(n, 2)
        if c.valu and pv & c.s:
            if p.trans and not c.trans: n = max(n, 1)
            if 'permlane' in c.op or c.dpp: n = max(n, 2)
            if c.op.startswith(('v_readfirstlane', 'v_readlane')): n = max(n, 1)
            if p.op.startswith('v_dot'): n = max(n, 3)
        if p.op.startswith('v_dot') and (pv & (c.s | c.d)): n = max(n, 3)
        if ps & c.s:
            if c.valu: n = max(n, 4 if 'lane' in c.op else 2)
            if c.vmem: n = max(n, 5)
            if c.salu: n = max(n, 1)
        if p.op.startswith('v_cmp') and ('s', 106) in ps and c.valu and c.op.startswith('v_cndmask'): n = max(n, 2)
    if p.mfma:
        big = '32x32' in p.op
        if c.mfma:
            if p.d & (set(c.A) | set(c.B)): n = max(n, 12 if big else 8)
            if p.d & set(c.C) and set(c.C) != p.d: n = max(n, 10 if big else 6)
            if p.d & c.d and set(c.C) != p.d: n = max(n, 10 if big else 6)
        elif (c.valu or c.ds or c.vmem) and p.d & (c.s | c.d): n = max(n, 12 if big else 8)
        if (c.valu) and set(p.C) & c.d: n = max(n, 7 if big else 3)
    if p.salu and ('s', 124) in p.d and c.dma: n = max(n, 1)
    if p.wide_store and c.valu and p.data & c.d: n = max(n, 2)
    return n

class K:
    def __init__(self): self.L = []
    def e(self, text, tag=None):
        for line in text.split('\n'):
            if line.strip(): self.L.append(Ins(line, tag))
    def ext(self, other): self.L += other.L if isinstance(other, K) else other
    def finish(self):
        out = []
        vm = []
        lg = []
        sm = set()
        def wait(vn=None, ln=None):
            nonlocal vm, lg, sm
            s = 's_waitcnt'
            if vn is not None: vn = min(vn, 63); s += f' vmcnt({vn})'; vm = vm[len(vm) - vn:] if vn else []
            if ln is not None:
                ln = min(ln, 15); s += f' lgkmcnt({ln})'; lg = lg[len(lg) - ln:] if ln else []
                if ln == 0: sm = set()
            out.append(Ins(s))
        for c in self.L:
            if c.pseudo:
                a = c.text.split()
                if a[0] == '@waitvm':
                    idx = [k for k, o in enumerate(vm) if o.tag in a[1:]]
                    if idx: wait(vn=len(vm) - 1 - idx[-1])
                elif a[0] == '@waitlg':
                    if len(a) == 1:
                        if lg or sm: wait(ln=0)
                    else:
                        idx = [k for k, o in enumerate(lg) if o.tag in a[1:]]
                        if idx: wait(ln=0 if sm else len(lg) - 1 - idx[-1])
                elif a[0] == '@note': out.append(Ins('; ' + c.text[5:]))
                else: raise ValueError(c.text)
                continue
            if c.op == 's_waitcnt':
                m = re.search(r'vmcnt\((\d+)\)', c.text)
                if m: n = int(m.group(1)); vm = vm[len(vm) - n:] if n and n < len(vm) else (vm if n else [])
                m = re.search(r'lgkmcnt\((\d+)\)', c.text)
                if m:
                    n = int(m.group(1)); lg = lg[len(lg) - n:] if n and n < len(lg) else (lg if n else [])
                    if n == 0: sm = set()
                out.append(c); continue
            touch = c.s | c.d
            vi = [k for k, o in enumerate(vm) if o.d & touch]
            li = [k for k, o in enumerate(lg) if o.d & touch]
            vn = len(vm) - 1 - vi[-1] if vi else None
            ln = len(lg) - 1 - li[-1] if li else None
            if sm & touch or (ln is not None and sm): ln = 0
            if vn is not None or ln is not None: wait(vn, ln)
            dist = 0; req = 0
            for p in reversed(out):
                if dist >= 12: break
                r = need(p, c) - dist
                if r > req: req = r
                dist += states(p)
            while req > 0:
                n = min(req, 16); out.append(Ins(f's_nop {n-1}')); req -= n
            out.append(c)
            if c.vmem: vm.append(c)
            if c.ds: lg.append(c)
            if c.smem: sm |= c.d if c.d else set()
        return out
    def text(self): return '\n'.join(('' if i.label else '    ') + i.text for i in self.finish()) + '\n'

def weave(main, fill, per=1, start=0, every=1):
    out = []; f = list(fill); n = 0
    for i in main:
        out.append(i)
        if i.mfma:
            if n >= start and (n - start) % every == 0:
                k = 0
                while f and k < per:
                    x = f.pop(0); out.append(x)
                    if not x.pseudo: k += 1
            n += 1
    return out + f


_uid = [0]
def pipeline(groups, dist, extra=(), per=1, first_extra=0):
    out = []; ex = [x if isinstance(x, Ins) else Ins(x) for x in extra]
    tags = []
    def mk(n):
        _uid[0] += 1; t = f"pl{_uid[0]}"; tags.append(t)
        return [Ins(x, t) for x in groups[n][0]]
    for n in range(min(dist, len(groups))): out += mk(n)
    cnt = 0
    for n, (_, comps) in enumerate(groups):
        ld = mk(n + dist) if n + dist < len(groups) else []
        if groups[n][0]: out.append(Ins(f"@waitlg {tags[n]}"))
        m = len(comps); nl = len(ld); done = 0
        for k, c in enumerate(comps):
            out.append(c if isinstance(c, Ins) else Ins(c))
            upto = (nl * (k + 1) + m - 1) // m
            placed = upto - done
            out += ld[done:upto]; done = upto
            if cnt >= first_extra:
                room = per - placed if per > 0 else 0
                while ex and room > 0:
                    x = ex.pop(0); out.append(x)
                    if not x.pseudo: room -= 1
            cnt += 1
    return out + ex
```

```python
import sys, struct, math
from asmlib import K, Ins, weave, pipeline

NAME = "sequential_preLN__spectral_fnet__mixer_gmlp__prompt"
def f2u(x): return struct.unpack('<I', struct.pack('<f', x))[0]
def fx(x): return f"0x{f2u(x):08x}"

WS_HP = 0
WS_Z2 = 2 << 20
WS_U  = 5 << 20
WS_ST = 8 << 20
WS_F1 = WS_ST + (128 << 10)
WS_F2 = WS_F1 + (32 << 10)
WS_F3 = WS_F2 + (32 << 10)
WS_F4 = WS_F3 + (32 << 10)
WS_EP = WS_F4 + (32 << 10)
WS_CS = 9 << 20
WS_TS = 12 << 20
WS_DBG = 16 << 20
WS_SIZE = 0x10000000
OOB = 0x7fff0000

R0 = 0
R1 = 65536
MISC = R1 + 14 * 6144
L_GX = MISC
L_R = MISC + 8192
L_XS = MISC + 8192 + 256
LDS_SIZE = 163840

SX, SWI, SWS, SB, SWO, SO, SW = 4, 8, 12, 16, 20, 24, 28
sW, sS2, sEB, sP, sC, sT1A, sT1B, sTAG = 32, 33, 34, 35, 36, 37, 38, 39
sCNT, sCB, sLW = 58, 56, 57
sT1, sKH, sZ2, sPC, sCP = 62, 63, 98, 99, 100
NS = 6
CODE_KB = 64
SPIN_MAX = 200000
def srd(b): return f"s[{b}:{b+3}]"
def vr(a, n=4): return f"v[{a}:{a+n-1}]" if n > 1 else f"v{a}"
def ar(a, n=4): return f"a[{a}:{a+n-1}]" if n > 1 else f"a{a}"
vL, vI, vQ = 0, 1, 2

class Gen:
    def __init__(self, stop=None, dump=None, stamps=False):
        self.k = K(); self.stop = stop; self.dump = dump; self.stamps = stamps; self.nst = 0; self.done = False
        self.lab = 0
    def e(self, t, tag=None):
        if not self.done: self.k.e(t, tag)
    def ext(self, L):
        if not self.done: self.k.ext(L)
    def stamp(self, name):
        if self.stamps and not self.done:
            n = self.nst; self.nst += 1
            assert n < 17
            self.k.e(f"@note stamp {n} {name}")
            self.k.e(f"s_memrealtime s[{64+2*n}:{65+2*n}]")
            self.names.append(name)
    names = []
    def point(self, name, first, n, acc=False):
        if self.stop == name and not self.done:
            e = self.k.e
            e("s_waitcnt vmcnt(0) lgkmcnt(0)\ns_nop 15")
            e(f"s_lshl_b32 s40, s2, 2\ns_add_u32 s40, s40, s{sW}\ns_mul_i32 s40, s40, {n*256}\ns_add_u32 s40, s40, {WS_DBG}")
            e(f"v_lshlrev_b32 v3, 2, v{vL}")
            for r in range(n):
                e(f"buffer_store_dword {'a' if acc else 'v'}{first+r}, v3, {srd(SW)}, s40 offen")
                e("s_add_u32 s40, s40, 256")
            self.finish_epoch()
            self.done = True
    def prologue(self):
        e = self.e
        e("s_cmp_ge_u32 s2, 256\ns_cbranch_scc1 L_end")
        self.stamp("start")
        for b, off in ((SX, 0), (SW, 96), (SWI, 48), (SWS, 56), (SB, 64), (SWO, 72), (SO, 80)):
            e(f"s_load_dwordx2 s[{b}:{b+1}], s[0:1], {off}")
        e(f"v_lshrrev_b32 v3, 6, v0\nv_and_b32 v{vL}, 63, v0\nv_readfirstlane_b32 s{sW}, v3")
        e(f"v_and_b32 v{vI}, 15, v{vL}\nv_lshrrev_b32 v{vQ}, 4, v{vL}")
        for b, n in ((SX, 2048*1024), (SW, WS_SIZE), (SWI, 512*2752), (SWS, 2048*4096), (SB, 4096), (SWO, 688*1024), (SO, 2048*1024)):
            e(f"s_mov_b32 s{b+2}, {n}\ns_mov_b32 s{b+3}, 0x20000")
        e(f"s_and_b32 s40, s2, 7\ns_bfe_u32 s{sEB}, s2, 0x30003\ns_lshr_b32 s41, s2, 6")
        e("s_sub_u32 s42, 32, s40\ns_sub_u32 s43, 16, s40\ns_add_u32 s44, 16, s40")
        e("s_cmp_eq_u32 s40, 0\ns_cselect_b32 s42, 24, s42\ns_cselect_b32 s44, 8, s44")
        e(f"s_cmp_eq_u32 s41, 1\ns_cselect_b32 s{sS2}, s42, s40")
        e(f"s_cmp_eq_u32 s41, 2\ns_cselect_b32 s{sS2}, s43, s{sS2}")
        e(f"s_cmp_eq_u32 s41, 3\ns_cselect_b32 s{sS2}, s44, s{sS2}")
        e(f"s_mov_b32 s{sP}, s{sS2}\ns_mov_b32 s{sC}, s{sEB}")
        e(f"s_mov_b32 s{sT1A}, s{sP}\ns_sub_u32 s{sT1B}, 64, s{sP}\ns_cmp_eq_u32 s{sP}, 0\ns_cselect_b32 s{sT1B}, 32, s{sT1B}")
        e(f"s_mov_b32 s{sCNT}, 0")

    def a_loads(self):
        e = self.e
        for v in range(4):
            e(f"v_add_u32 v8, {4*v}, v{vQ}\nv_xor_b32 v9, v8, v{vI}\nv_lshlrev_b32 v9, 4, v9\nv_lshl_add_u32 v{4+v}, v8, 15, v9")
        e(f"s_lshl_b32 s40, s{sW}, 19\ns_lshl_b32 s41, s{sS2}, 10\ns_add_u32 s40, s40, s41")
        e(f"s_lshl_b32 s41, s{sW}, 14")
        for kq in range(4):
            for v in range(4):
                e(f"s_add_u32 m0, s41, {R0 + kq*4096 + v*1024}")
                e(f"buffer_load_dwordx4 v{4+v}, {srd(SX)}, s40 offen lds", tag=f"xa{kq}")
            if kq < 3: e("s_add_u32 s40, s40, 256")

    def a_consts(self):
        e = self.e
        e(f"s_lshl_b32 s40, s{sEB}, 5\ns_lshl_b32 s41, s{sW}, 3\ns_add_u32 s40, s40, s41")
        e(f"v_lshrrev_b32 v8, 1, v{vI}\nv_add_u32 v8, s40, v8")
        e("v_cmp_eq_u32 vcc, 0, v8\nv_mov_b32 v10, 0x100\nv_cndmask_b32 v8, v8, v10, vcc")
        e("v_and_b32 v10, 1, v8\nv_sub_u32 v10, 0, v10\nv_and_b32 v10, 0x80008000, v10")
        e(f"v_cvt_f32_u32 v8, v8\nv_mul_f32 v8, {fx(1/512)}, v8")
        e(f"v_and_b32 v9, 1, v{vI}\nv_cvt_f32_u32 v9, v9\nv_mul_f32 v9, 0x3e800000, v9")
        e(f"v_lshlrev_b32 v11, 3, v{vQ}\nv_cvt_f32_u32 v11, v11\nv_fmac_f32 v9, v11, v8")
        for ks in range(8):
            for j in range(8): e(f"v_fmamk_f32 v{12+j}, v8, {fx(32*ks+j)}, v9")
            for j in range(8): e(f"v_cos_f32 v{12+j}, v{12+j}")
            for j in range(4): e(f"v_cvt_pk_bf16_f32 v{64+4*ks+j}, v{12+2*j}, v{13+2*j}")
            for j in range(4): e(f"v_xor_b32 v{96+4*ks+j}, v10, v{64+4*ks+j}")
        e(f"s_lshl_b32 s40, s{sW}, 4\nv_add_u32 v8, s40, v{vI}\nv_cvt_f32_u32 v8, v8\nv_mul_f32 v8, {fx(1/2048)}, v8")
        e(f"v_lshlrev_b32 v9, 7, v{vQ}\nv_add_u32 v9, s{sS2}, v9\nv_cvt_f32_u32 v9, v9\nv_mul_f32 v9, v9, v8")
        e(f"v_and_b32 v10, 1, v{vI}\nv_sub_u32 v10, 0, v10\nv_and_b32 v10, 0x80008000, v10")
        for j in range(8): e(f"v_fmamk_f32 v{12+j}, v8, {fx(32*(16*(j>>2)+(j&3)))}, v9")
        for j in range(8): e(f"v_cos_f32 v{20+j}, v{12+j}")
        for j in range(8): e(f"v_sin_f32 v{12+j}, v{12+j}")
        for j in range(4): e(f"v_cvt_pk_f16_f32 v{208+j}, v{20+2*j}, v{21+2*j}")
        for j in range(4): e(f"v_cvt_pk_f16_f32 v{216+j}, v{12+2*j}, v{13+2*j}")
        for j in range(4): e(f"v_xor_b32 v{212+j}, v10, v{208+j}\nv_xor_b32 v{220+j}, v10, v{216+j}")
        e(f"v_cvt_f32_u32 v8, v{vI}\nv_mul_f32 v8, {fx(1/32)}, v8")
        e(f"v_lshlrev_b32 v9, 2, v{vQ}\nv_cvt_f32_u32 v9, v9\nv_mul_f32 v9, v9, v8")
        for j in range(4): e(f"v_fmamk_f32 v{12+j}, v8, {fx(j)}, v9")
        for j in range(4): e(f"v_cos_f32 v{20+j}, v{12+j}")
        for j in range(4): e(f"v_sin_f32 v{12+j}, v{12+j}")
        for j in range(4): e(f"v_cvt_pk_f16_f32 v{32+j}, v{20+j}, v{12+j}")
        for j in range(4): e(f"v_xor_b32 v{36+j}, v10, v{32+j}")
        for j in range(4):
            if j & 1: e(f"v_xor_b32 v{40+j}, 0x80008000, v{32+j}\nv_xor_b32 v{44+j}, 0x80008000, v{36+j}")
            else: e(f"v_mov_b32 v{40+j}, v{32+j}\nv_mov_b32 v{44+j}, v{36+j}")
        for j in range(4): e(f"v_mov_b32 v{152+j}, 0x3f803f80")
        e(f"s_lshl_b32 s41, s{sW}, 14\nv_lshlrev_b32 v8, 8, v{vI}\nv_add_u32 v8, s41, v8")
        for k in range(4):
            e(f"v_add_u32 v9, {4*k}, v{vQ}\nv_xor_b32 v9, v9, v{vI}\nv_lshl_add_u32 v{4+k}, v9, 4, v8")
            for j in range(1, 4): e(f"v_xor_b32 v{12+4*j+k}, {j << 14}, v{4+k}")

    def diag_select(self, dst, g, tmp):
        e = self.e
        e(f"v_and_b32 v{tmp}, 3, v{vI}")
        e(f"v_cmp_eq_u32 vcc, 1, v{tmp}\nv_cndmask_b32 v{dst}, v{g}, v{g+1}, vcc")
        e(f"v_cmp_eq_u32 vcc, 2, v{tmp}\nv_cndmask_b32 v{dst}, v{dst}, v{g+2}, vcc")
        e(f"v_cmp_eq_u32 vcc, 3, v{tmp}\nv_cndmask_b32 v{dst}, v{dst}, v{g+3}, vcc")

    def a_gemm(self):
        e = self.e
        XF = 160
        def rd(n, ks): return f"ds_read_b128 {vr(XF+4*(n%8))}, v{4+(ks&3)} offset:{R0+(ks>>2)*4096}"
        for kq in range(4):
            e(f"@waitvm xa{kq}")
            for k in range(4): e(rd(4*kq+k, 4*kq+k))
            for k in range(4):
                ks = 4*kq+k; x = vr(XF+4*(ks%8)); c = (lambda a: "0" if ks == 0 else vr(a))
                e(f"v_mfma_f32_16x16x32_bf16 v[144:147], {x}, {x}, {c(144)}")
                e(f"v_mfma_f32_16x16x32_bf16 v[148:151], v[152:155], {x}, {c(148)}")
                e(f"v_mfma_f32_16x16x32_bf16 v[128:131], {x}, {vr(64+4*ks)}, {c(128)}")
        self.diag_select(8, 144, 9)
        e(f"v_mul_f32 v9, {fx(1/512)}, v148\nv_mul_f32 v8, {fx(1/512)}, v8\nv_fma_f32 v8, -v9, v9, v8")
        e(f"v_max_f32 v8, 0, v8\nv_add_f32 v8, {fx(1e-5)}, v8\nv_rsq_f32 v8, v8")
        e(f"s_lshl_b32 s40, s{sW}, 6\ns_add_u32 s40, s40, {L_R}\nv_lshl_add_u32 v9, v{vI}, 2, s40")
        e(f"v_lshrrev_b32 v10, 2, v{vI}\nv_cmp_eq_u32 vcc, v10, v{vQ}\ns_and_saveexec_b64 s[42:43], vcc")
        e(f"ds_write_b32 v9, v8")
        e("s_mov_b64 exec, s[42:43]")
        e("@waitlg\ns_barrier")
        groups = []
        for j in range(1, 4):
            for kq in range(4):
                n0 = (j-1)*16 + 4*kq
                groups.append(([f"ds_read_b128 {vr(XF+4*((n0+k)%12))}, v{12+4*j+k} offset:{R0+kq*4096}" for k in range(4)],
                               [f"v_mfma_f32_16x16x32_bf16 {vr(128+4*j)}, {vr(XF+4*((n0+k)%12))}, {vr(64+4*(4*kq+k))}, {'0' if kq+k == 0 else vr(128+4*j)}" for k in range(4)]))
        fill = K()
        fill.e(f"v_lshl_add_u32 v9, v{vQ}, 4, s40")
        for j in range(4):
            fill.e(f"v_xor_b32 v10, {j << 6}, v9\nds_read_b128 {vr(224+4*j)}, v10")
        fill.e(f"s_lshl_b32 s40, s{sW}, 11\ns_lshr_b32 s41, s{sW}, 1\ns_lshl_b32 s41, s41, 10\ns_add_u32 s40, s40, s41")
        fill.e(f"s_and_b32 s41, s{sW}, 1\ns_lshl_b32 s41, s41, 3\ns_add_u32 s40, s40, s41\ns_add_u32 s40, s40, {L_GX}")
        fill.e(f"v_lshl_add_u32 v9, v{vL}, 4, s40")
        self.ext(pipeline(groups, 2, fill.L, per=2, first_extra=8))
        for j in range(4):
            for r in range(4): e(f"v_mul_f32 v{128+4*j+r}, v{128+4*j+r}, v{224+4*j+r}")
            e(f"v_cvt_pk_f16_f32 v{12+2*j}, v{128+4*j}, v{129+4*j}\nv_cvt_pk_f16_f32 v{13+2*j}, v{130+4*j}, v{131+4*j}")
            e(f"v_xor_b32 v10, {((j>>1)<<10) | ((j&1)<<3)}, v9\nds_write_b64 v10, v[{12+2*j}:{13+2*j}]")
        e(f"v_lshlrev_b32 v9, 4, v{vL}\nv_add_u32 v9, {L_GX}, v9")
        e("@waitlg\ns_barrier")
        self.stamp("A bar2")

    def a_stage1(self):
        e = self.e
        for jt in range(4):
            for ks in range(2): e(f"ds_read_b128 {vr(64+8*jt+4*ks)}, v9 offset:{jt*2048+ks*1024}")
        e(f"v_lshrrev_b32 v10, 1, v{vQ}\nv_and_b32 v11, 1, v{vQ}\nv_lshl_or_b32 v10, v11, 1, v10\nv_lshlrev_b32 v{31}, 4, v10")
        e(f"v_lshl_add_u32 v10, v{vI}, 15, v31")
        e(f"s_lshl_b32 s40, s{sW}, 19\ns_lshl_b32 s41, s{sS2}, 10\ns_add_u32 s40, s40, s41\ns_lshl_b32 s41, s{sEB}, 7\ns_add_u32 s40, s40, s41")
        for jt in range(4):
            for ks in range(2):
                e(f"v_mfma_f32_16x16x32_f16 {vr(96+4*jt)}, {vr(64+8*jt+4*ks)}, {vr(208+4*ks)}, {'0' if ks == 0 else vr(96+4*jt)}")
                e(f"v_mfma_f32_16x16x32_f16 {vr(112+4*jt)}, {vr(64+8*jt+4*ks)}, {vr(216+4*ks)}, {'0' if ks == 0 else vr(112+4*jt)}")
        for P in range(2):
            for t in range(2):
                jt = 2*P+t
                for h in range(2):
                    a = 96+4*jt+2*h; b = 112+4*jt+2*h
                    e(f"v_add_f32 v{a}, v{a}, v{b+1}\nv_sub_f32 v{a+1}, v{a+1}, v{b}")
                    e(f"v_cvt_pk_f16_f32 v{12+4*P+2*t+h}, v{a}, v{a+1}")
            e(f"v_permlane16_swap_b32 v{12+4*P}, v{14+4*P}\nv_permlane16_swap_b32 v{13+4*P}, v{15+4*P}")
            e(f"buffer_store_dwordx4 {vr(12+4*P)}, v10, {srd(SW)}, s40 offen offset:{64*P} sc1", tag="hst")
        self.stamp("A stored")

    def code_prefetch(self):
        e = self.e
        e("s_getpc_b64 s[42:43]\ns_and_b32 s42, s42, 0xffffff00")
        e(f"s_lshr_b32 s40, s2, 3\ns_and_b32 s40, s40, {CODE_KB//4-1}\ns_lshl_b32 s40, s40, 2\ns_add_u32 s40, s40, s{sW}\ns_lshl_b32 s40, s40, 10")
        e(f"v_lshl_add_u32 v8, v{vL}, 4, s40")
        e("global_load_dwordx4 v[252:255], v8, s[42:43]")

    def epoch(self):
        e = self.e
        e(f"s_add_u32 s42, s{SW}, {WS_EP}\ns_addc_u32 s43, s{SW+1}, 0\ns_load_dword s{sTAG}, s[42:43], 0")
    def epoch2(self):
        self.e(f"s_mul_i32 s{sTAG}, s{sTAG}, 0x9e3779b1\ns_add_u32 s{sTAG}, s{sTAG}, 0x7f4a7c15")
    def finish_epoch(self):
        e = self.k.e
        self.lab += 1
        e(f"s_add_u32 s40, s2, s{sW}\ns_cmp_lg_u32 s40, 0\ns_cbranch_scc1 L_ne{self.lab}")
        e(f"v_mov_b32 v3, 0\nv_mov_b32 v4, s{sTAG}\ns_mov_b32 s40, {WS_EP}\ns_mov_b64 exec, 1")
        e(f"buffer_store_dword v4, v3, {srd(SW)}, s40 offen sc1")
        e(f"s_mov_b64 exec, -1\ns_waitcnt vmcnt(0)\nL_ne{self.lab}:")

    def publish(self, base, sidx):
        e = self.e
        e(f"s_lshl_b32 s40, s{sidx}, 7\ns_lshl_b32 s41, s{sW}, 2\ns_add_u32 s40, s40, s41\ns_add_u32 s40, s40, {base}")
        e(f"v_mov_b32 v3, 0\nv_mov_b32 v4, s{sTAG}")
        e("s_waitcnt vmcnt(0)\ns_mov_b64 exec, 1")
        e(f"buffer_store_dword v4, v3, {srd(SW)}, s40 offen sc1")
        e("s_mov_b64 exec, -1")

    def await_flags(self, voff, soff, width):
        e = self.e
        self.lab += 1; L = self.lab
        e(f"L_poll{L}:")
        e(f"buffer_load_dword{'x4' if width == 4 else ''} {vr(4, width)}, v{voff}, {srd(SW)}, s{soff} offen sc1")
        e(f"s_add_u32 s{sCNT}, s{sCNT}, 1\ns_waitcnt vmcnt(0)")
        if width == 4:
            e(f"v_xor_b32 v4, s{sTAG}, v4\nv_xor_b32 v5, s{sTAG}, v5\nv_xor_b32 v6, s{sTAG}, v6\nv_xor_b32 v7, s{sTAG}, v7")
            e("v_or3_b32 v4, v4, v5, v6\nv_or_b32 v4, v4, v7\nv_cmp_ne_u32 vcc, 0, v4")
        else:
            e(f"v_cmp_ne_u32 vcc, s{sTAG}, v4")
        e(f"s_cmp_gt_u32 s{sCNT}, {SPIN_MAX}\ns_cbranch_scc1 L_pdone{L}")
        e(f"s_cbranch_vccnz L_poll{L}")
        e(f"L_pdone{L}:")

    def w_addr(self):
        e = self.e
        e(f"s_mul_i32 s40, s{sC}, 12\ns_sub_u32 s40, 86, s40")
        e("s_mov_b32 s41, 2752")
        for v in range(3):
            e(f"v_add_u32 v8, {64*v}, v{vL}\nv_mul_u32_u24 v9, 171, v8\nv_lshrrev_b32 v9, 11, v9")
            e("v_mul_u32_u24 v10, 12, v9\nv_sub_u32 v10, v8, v10")
            e("v_lshrrev_b32 v11, 2, v9\nv_and_b32 v11, 2, v11\nv_xor_b32 v10, v10, v11")
            e(f"v_cmp_gt_u32 vcc, s40, v10\nv_lshlrev_b32 v10, 4, v10\nv_mov_b32 v11, {OOB}\nv_cndmask_b32 v10, v11, v10, vcc")
            e(f"v_mad_u32_u24 v{48+v}, v9, s41, v10")
            e(f"v_sub_u32 v9, 15, v9\nv_mad_u32_u24 v{51+v}, v9, s41, v10")
            e(f"v_lshlrev_b32 v9, 4, v8\nv_cndmask_b32 v{55+v}, v11, v9, vcc")
        e(f"s_cmp_eq_u32 s{sW}, 0\ns_cselect_b32 s40, 12, 0\nv_cmp_gt_u32 vcc, s40, v{vL}")
        e(f"v_add_u32 v8, {256*2752}, v51\nv_cndmask_b32 v54, v8, v51, vcc")
        e(f"v_bfe_u32 v8, v{vL}, 2, 2\nv_lshl_add_u32 v8, v{vQ}, 3, v8\nv_mul_u32_u24 v8, 192, v8")
        e(f"v_and_b32 v9, 3, v{vL}\nv_lshl_add_u32 v8, v9, 3, v8\nv_add_u32 v8, {R1}, v8")
        e(f"v_and_b32 v9, 1, v{vQ}\nv_lshlrev_b32 v9, 5, v9\nv_add_u32 v58, v8, v9\nv_sub_u32 v59, v8, v9")
        e("v_add_u32 v60, 49152, v58\nv_add_u32 v61, 49152, v59")

    def w_loads(self, part, ns, tag):
        k = K()
        for n in ns:
            if n < 4: k.e(f"s_mul_i32 s44, s{sW}, {16*2752}\ns_add_u32 s44, s44, {64*n*2752 + part*1376}")
            else: k.e(f"s_mul_i32 s44, s{sW}, {16*2752}\ns_sub_u32 s44, {(753-64*n)*2752 + part*1376}, s44")
            k.e(f"s_add_u32 s44, s44, s{sCB}")
            for v in range(3):
                k.e(f"s_add_u32 m0, s{sLW}, {R1 + n*12288 + v*1024}")
                if n == 4 and v == 0:
                    k.e(f"s_sub_u32 s45, s44, {256*2752}")
                    k.e(f"buffer_load_dwordx4 v54, {srd(SWI)}, s45 offen lds", tag)
                else:
                    k.e(f"buffer_load_dwordx4 v{(48 if n < 4 else 51)+v}, {srd(SWI)}, s44 offen lds", tag)
        return k.L

    def tr(self, dst, ks, ft, half, acc=False):
        a = (58 if ks < 8 else 60) + (ft & 1)
        return f"ds_read_b64_tr_b16 {'a' if acc else 'v'}[{dst}:{dst+1}], v{a} offset:{(ks & 7)*6144 + ft*32 + half*768}"

    def cs_compute(self, part, F=192, A=240):
        e = self.e
        e(f"s_bitcmp1_b32 s{sW}, 0\ns_cselect_b64 vcc, -1, 0")
        e("v_cndmask_b32 v8, v58, v59, vcc")
        e(f"s_lshl_b32 s40, s{sW}, 5\nv_add_u32 v23, s40, v8\nv_add_u32 v24, 49152, v23")
        e(f"s_and_b32 s41, s{sW}, 1\ns_lshl_b32 s41, s41, 5\ns_add_u32 s41, s41, 128\nv_add_u32 v25, s41, v8\nv_add_u32 v26, 49152, v25")
        for j in range(4): e(f"v_mov_b32 v{A+8+j}, 0x3f803f80")
        groups = []
        for kp in range(8):
            ld = []; cp = []
            for kk in range(2):
                ks = 2*kp+kk
                for t in range(2):
                    d = F + 4*((4*kp+2*kk+t) % 12)
                    for h in range(2): ld.append(f"ds_read_b64_tr_b16 v[{d+2*h}:{d+2*h+1}], v{23+2*t+(ks>>3)} offset:{(ks&7)*6144+h*768}")
                    cp.append(f"v_mfma_f32_16x16x32_bf16 {vr(A+4*t)}, {vr(d)}, {vr(A+8)}, {'0' if ks == 0 else vr(A+4*t)}")
            groups.append((ld, cp))
        self.ext(pipeline(groups, 2 if False else 1))
        e(f"s_lshl_b32 s42, s2, 10\ns_add_u32 s42, s42, {WS_CS + part*512}")
        e(f"s_lshl_b32 s40, s40, 1\ns_lshl_b32 s41, s41, 1\ns_add_u32 s40, s40, s42\ns_add_u32 s41, s41, s42")
        e(f"v_lshlrev_b32 v8, 4, v{vQ}")
        e("s_mov_b32 exec_lo, 0x00010001\ns_mov_b32 exec_hi, 0x00010001")
        e(f"buffer_store_dwordx4 {vr(A)}, v8, {srd(SW)}, s40 offen", tag=f"cs{part}")
        e(f"buffer_store_dwordx4 {vr(A+4)}, v8, {srd(SW)}, s41 offen", tag=f"cs{part}")
        e("s_mov_b64 exec, -1")

    def cs_load(self, part, dst):
        k = K()
        k.e(f"s_lshl_b32 s42, s2, 10\ns_add_u32 s42, s42, {WS_CS + part*512}\nv_lshlrev_b32 v8, 4, v{vQ}")
        for t in range(6): k.e(f"buffer_load_dwordx4 {vr(dst+4*t)}, v8, {srd(SW)}, s42 offen offset:{64*t} sc1")
        return k.L

    def xc_loads(self):
        e = self.e
        e(f"v_lshrrev_b32 v20, 3, v{vL}\nv_and_b32 v21, 7, v{vL}\nv_xor_b32 v21, v21, v{vQ}\nv_lshlrev_b32 v21, 4, v21")
        e("v_lshl_add_u32 v22, v20, 16, v21\nv_xor_b32 v23, 64, v22")
        e("v_sub_u32 v20, 7, v20\nv_lshl_add_u32 v24, v20, 16, v21\nv_xor_b32 v25, 64, v24")
        e(f"s_lshl_b32 s46, s{sW}, 7\ns_lshl_b32 s47, s{sW}, 14")
        for v in range(8):
            t1 = sT1A if v < 4 else sT1B
            e(f"s_lshl_b32 s44, s{t1}, 10\ns_add_u32 s44, s44, s46\ns_add_u32 s45, s44, {512*1024*(v&3)}")
            e(f"s_add_u32 m0, s47, {R0 + v*1024}")
            e(f"buffer_load_dwordx4 v{22+(v&1)}, {srd(SX)}, s45 offen lds", tag="xc")
            e(f"s_sub_u32 s45, {(2048-448-512*(v&3))*1024 + 896}, s44")
            e(f"s_add_u32 m0, s47, {R0 + 8192 + v*1024}")
            if v == 0:
                e("v_add_u32 v26, s45, v24\nv_and_b32 v26, 0x1fffff, v26")
                e(f"buffer_load_dwordx4 v26, {srd(SX)}, 0 offen lds", tag="xc")
            else:
                e(f"buffer_load_dwordx4 v{24+(v&1)}, {srd(SX)}, s45 offen lds", tag="xc")
        e(f"s_sub_u32 s45, 1024, s46\ns_cmp_eq_u32 s{sW}, 0\ns_cselect_b32 s45, 512, s45")
        for tt in range(4):
            t1 = sT1A if tt < 2 else sT1B
            e(f"v_mov_b32 v{27+tt}, 0")
            e(f"s_sub_u32 s44, {2048-1024*(tt&1)}, s{t1}\nv_lshlrev_b32 v20, 6, v{vI}\nv_sub_u32 v20, s44, v20\nv_and_b32 v20, 0x7ff, v20\nv_lshlrev_b32 v20, 10, v20")
            e(f"s_mov_b64 exec, 0xffff\nbuffer_load_short_d16_hi v{27+tt}, v20, {srd(SX)}, s45 offen\ns_mov_b64 exec, -1")

    def xc_unpack(self):
        e = self.e
        e(f"s_lshl_b32 s47, s{sW}, 14\nv_lshlrev_b32 v8, 7, v{vI}\nv_add_u32 v8, s47, v8\nv_lshrrev_b32 v9, 1, v{vI}")
        e(f"v_lshlrev_b32 v10, 1, v{vQ}")
        e("v_xor_b32 v11, v10, v9\nv_lshl_add_u32 v12, v11, 4, v8\nv_xor_b32 v13, 16, v12")
        e("v_sub_u32 v11, 6, v10\nv_xor_b32 v11, v11, v9\nv_lshl_add_u32 v14, v11, 4, v8\nv_xor_b32 v15, 16, v14")
        e("v_sub_u32 v11, 8, v10\nv_and_b32 v11, 7, v11\nv_xor_b32 v11, v11, v9\nv_lshl_add_u32 v16, v11, 4, v8")
        e("@waitvm xc")
        T = 192
        for tt in range(4):
            for h in range(2): e(f"ds_read_b128 {vr(T+16*tt+4*h)}, v{12+h} offset:{R0+tt*2048}")
            for h in range(2): e(f"ds_read_b128 {vr(T+16*tt+8+4*h)}, v{14+h} offset:{R0+8192+tt*2048}")
        e("s_mov_b32 exec_lo, 0xffff0000")
        for tt in range(4): e(f"ds_read_u16_d16_hi v{27+tt}, v16 offset:{R0+8192+tt*2048}")
        e("s_mov_b64 exec, -1")
        def unp(dst, src, half): return f"v_and_b32 v{dst}, 0xffff0000, v{src}" if half else f"v_lshlrev_b32 v{dst}, 16, v{src}"
        for tt in range(4):
            for n in range(16):
                o = 16*tt + 4*(n & 3) + (n >> 2)
                e(unp(64+o, T+16*tt+(n >> 1), n & 1))
                if n: e(unp(128+o, T+16*tt+8+((16-n) >> 1), (16-n) & 1))
            e(f"v_mov_b32 v{128+16*tt}, v{27+tt}")
            for o in range(0, 16, 2):
                e(f"v_pk_add_f32 v[{128+16*tt+o}:{129+16*tt+o}], v[{128+16*tt+o}:{129+16*tt+o}], v[{64+16*tt+o}:{65+16*tt+o}] neg_lo:[0,1] neg_hi:[0,1]")
            e(f"v_mov_b32 v{27+tt}, v{64+16*tt}")
        e(f"s_lshl_b32 s40, s{sW}, 3\nv_add_u32 v10, s40, v10")
        e(f"v_xor_b32 v11, v10, v{vI}\nv_lshlrev_b32 v8, 10, v{vI}\nv_lshl_add_u32 v12, v11, 4, v8\nv_xor_b32 v13, 16, v12")
        e("v_add_u32 v10, 32, v10")
        for tt in range(4):
            e(f"s_cmp_eq_u32 s{sP}, 0\ns_cselect_b32 s40, {(32 if tt < 2 else 95) - 16*tt}, {63-16*tt}\ns_cselect_b32 s41, {31 if tt < 2 else 63}, 63")
            e(f"v_sub_u32 v9, s40, v{vI}\nv_and_b32 v9, s41, v9\nv_and_b32 v11, 15, v9\nv_xor_b32 v11, v11, v10\nv_lshlrev_b32 v9, 10, v9\nv_lshl_add_u32 v{14+tt}, v11, 4, v9")
        e(f"v_add_u32 v8, s47, v8")
        for k in range(4): e(f"v_add_u32 v9, {4*k}, v{vQ}\nv_xor_b32 v9, v9, v{vI}\nv_lshl_add_u32 v{18+k}, v9, 4, v8")
        e(f"s_lshl_b32 s40, s{sW}, 8\nv_lshl_add_u32 v22, v{vI}, 4, s40\nv_lshl_add_u32 v22, v{vQ}, 12, v22")
        e(f"s_cmp_eq_u32 s{sW}, 0\ns_cselect_b32 s60, 0xffff, 0\ns_mov_b32 s61, 0")

    def stage2(self):
        e = self.e
        T = 192
        for g in range(2):
            for ks in range(2):
                e(f"s_lshl_b32 s40, s{sT1A+g}, 15\ns_add_u32 s40, s40, {WS_HP + ks*16384}")
                for j in range(4):
                    e(f"buffer_load_dwordx4 {vr(T+32*g+16*ks+4*j)}, v22, {srd(SW)}, s40 offen offset:{1024*j} sc1")
        for g in range(2):
            for ks in range(2):
                b = T+32*g+16*ks
                for x in range(4):
                    for y in range(x+1, 4): e(f"v_swap_b32 v{b+4*x+y}, v{b+4*y+x}")
                for nt in range(2):
                    for wd in range(4):
                        a = 64+16*(2*g+nt)+4*wd
                        e(f"v_mfma_f32_16x16x32_f16 {vr(a)}, {vr(b+4*wd)}, {vr(32+8*nt+4*ks)}, {vr(a)}")
        for tt in range(4):
            a = 64+16*tt; m = 128+16*tt; P = T+16*tt
            for o in range(0, 16, 2): e(f"v_pk_add_f32 v[{m+o}:{m+o+1}], v[{m+o}:{m+o+1}], v[{a+o}:{a+o+1}]")
            e(f"v_cndmask_b32 v{a}, v{a}, v{27+tt}, s[60:61]")
            val = lambda base, n: base + 4*(n & 3) + (n >> 2)
            for k2 in range(8): e(f"v_cvt_pk_bf16_f32 v{P+k2}, v{val(a, 2*k2)}, v{val(a, 2*k2+1)}")
            e(f"ds_write_b128 v12, {vr(P)} offset:{R0+tt*16384}\nds_write_b128 v13, {vr(P+4)} offset:{R0+tt*16384}")
            for k2 in range(8): e(f"v_cvt_pk_bf16_f32 v{P+8+k2}, v{val(m, 2*k2)}, v{val(m, 2*k2+1)}")
            e(f"ds_write_b128 v{14+tt}, {vr(P+8)} offset:{R0}\nv_xor_b32 v{14+tt}, 16, v{14+tt}\nds_write_b128 v{14+tt}, {vr(P+12)} offset:{R0}")
        e("@waitlg\ns_barrier")
        self.stamp("HL bar")

    def z_gemm(self, ACC, stats, extra, first_extra=0, per=2):
        F = 160; groups = []; sm = []
        if stats:
            for ks in range(16):
                x = vr(64+4*ks)
                sm.append(f"v_mfma_f32_16x16x32_bf16 v[152:155], {x}, {x}, {'0' if ks == 0 else 'v[152:155]'}")
                sm.append(f"v_mfma_f32_16x16x32_bf16 v[156:159], v[232:235], {x}, {'0' if ks == 0 else 'v[156:159]'}")
        for n in range(32):
            ks = n >> 1; ld = []; cp = []
            for t in range(3):
                ft = 3*(n & 1) + t; d = F + 12*(n % 4) + 4*t
                ld += [self.tr(d, ks, ft, 0), self.tr(d+2, ks, ft, 1)]
                cp.append(f"v_mfma_f32_16x16x32_bf16 {vr(ACC+4*ft)}, {vr(d)}, {vr(64+4*ks)}, {'0' if ks == 0 else vr(ACC+4*ft)}")
            if sm and n >= 2: cp = [cp[0], sm.pop(0), cp[1], sm.pop(0), cp[2]]
            groups.append((ld, cp))
        self.ext(pipeline(groups, 3, extra, per=per, first_extra=first_extra))

    def h_stats(self):
        k = K(); e = k.e
        e(f"v_and_b32 v9, 3, v{vI}")
        e("v_cmp_eq_u32 vcc, 1, v9\nv_cndmask_b32 v8, v152, v153, vcc\nv_cmp_eq_u32 vcc, 2, v9\nv_cndmask_b32 v8, v8, v154, vcc\nv_cmp_eq_u32 vcc, 3, v9\nv_cndmask_b32 v8, v8, v155, vcc")
        e(f"v_lshrrev_b32 v9, 2, v{vI}\nv_lshlrev_b32 v9, 4, v9\nv_add_lshl_u32 v9, v9, v{vI}, 2")
        e("ds_bpermute_b32 v8, v9, v8")
        e(f"v_mul_f32 v11, {fx(1/512)}, v156")
        e(f"v_mul_f32 v8, {fx(1/512)}, v8\nv_fma_f32 v8, -v11, v11, v8\nv_max_f32 v8, 0, v8\nv_add_f32 v8, {fx(1e-5)}, v8\nv_rsq_f32 v10, v8")
        e("v_mul_f32 v11, -v11, v10" if False else "v_mul_f32 v11, v11, v10\nv_sub_f32 v11, 0, v11")
        return k.L

    def gelu(self, ACC, CS, T=160):
        e = self.e
        kk = 2*0.7978845608028654*math.log2(math.e)
        e(f"v_mov_b32 v8, {fx(-kk*0.044715)}\nv_mov_b32 v9, {fx(-kk)}")
        p = lambda a: f"v[{a}:{a+1}]"
        R = range(0, 24, 2)
        for o in R: e(f"v_pk_mul_f32 {p(CS+o)}, {p(CS+o)}, v[10:11] op_sel:[0,1] op_sel_hi:[1,1]")
        for o in R: e(f"v_pk_fma_f32 {p(ACC+o)}, {p(ACC+o)}, v[10:11], {p(CS+o)} op_sel_hi:[1,0,1]")
        for o in R: e(f"v_pk_mul_f32 {p(T+o)}, {p(ACC+o)}, {p(ACC+o)}")
        for o in R: e(f"v_pk_fma_f32 {p(T+o)}, {p(T+o)}, v[8:9], v[8:9] op_sel:[0,0,1] op_sel_hi:[1,0,1]")
        for o in R: e(f"v_pk_mul_f32 {p(T+o)}, {p(T+o)}, {p(ACC+o)}")
        for o in range(24): e(f"v_exp_f32 v{T+o}, v{T+o}")
        for o in R: e(f"v_pk_add_f32 {p(T+o)}, {p(T+o)}, 1.0 op_sel_hi:[1,0]")
        for o in range(24): e(f"v_rcp_f32 v{T+o}, v{T+o}")
        for o in R: e(f"v_pk_mul_f32 {p(ACC+o)}, {p(ACC+o)}, {p(T+o)}")

    def resid_reads(self):
        k = K(); e = k.e
        e(f"s_lshl_b32 s47, s{sC}, 7\ns_sub_u32 s46, 1536, s47\ns_cmp_lt_u32 s{sC}, 4\ns_cselect_b32 s47, s47, s46\ns_cselect_b32 s46, 2, -2")
        e(f"s_lshl_b32 s48, s46, 2\nv_mul_i32_i24 v23, s48, v{vQ}\nv_add_u32 v23, s47, v23")
        e(f"v_lshlrev_b32 v24, 4, v{vI}\ns_lshl_b32 s48, s{sW}, 14\nv_lshlrev_b32 v25, 10, v{vI}\nv_add_u32 v25, s48, v25")
        for dt in range(4):
            for r in range(4):
                n = 16*dt + r
                if n == 0:
                    e("v_mov_b32 v27, 0x200\nv_cmp_eq_u32 vcc, 0x400, v23\nv_cndmask_b32 v26, v23, v27, vcc")
                else:
                    e(f"s_mul_i32 s48, s46, {n}\nv_add_u32 v26, s48, v23")
                e(f"v_xad_u32 v26, v26, v24, v25\nds_read_u16 v{32+4*dt+r}, v26 offset:{R0}")
        return k.L

    def row_consts(self):
        k = K(); e = k.e
        e(f"s_cmp_lt_u32 s{sW}, 2\ns_cselect_b32 s{sT1}, s{sT1A}, s{sT1B}")
        e(f"s_and_b32 s{sKH}, s{sW}, 1\ns_lshl_b32 s48, s{sKH}, 10\ns_add_u32 s48, s48, s{sT1}\nv_lshl_add_u32 v63, v{vI}, 6, s48")
        e(f"v_lshlrev_b32 v28, 1, v63\nv_mov_b32 v29, 0\nbuffer_load_short_d16_hi v29, v28, {srd(SB)}, 0 offen")
        e(f"v_lshrrev_b32 v28, 5, v{vL}\nv_and_b32 v62, 31, v{vL}\nv_xor_b32 v62, v62, v28\nv_lshlrev_b32 v62, 4, v62\nv_lshl_add_u32 v62, v28, 18, v62")
        e(f"s_lshl_b32 s48, s{sW}, 14\nv_lshlrev_b32 v28, 9, v{vI}\nv_add_u32 v28, s48, v28")
        for j in range(4): e(f"v_add_u32 v30, {4*j}, v{vQ}\nv_xor_b32 v30, v30, v{vI}\nv_lshl_add_u32 v{12+j}, v30, 4, v28")
        e(f"s_lshl_b32 s50, s{sT1}, 12\ns_lshl_b32 s48, s{sKH}, 11\ns_add_u32 s50, s50, s48")
        e(f"s_lshl_b32 s48, s{sKH}, 22\ns_add_u32 s51, s50, {1<<22}\ns_sub_u32 s51, s51, s48\ns_add_u32 s50, s50, s48")
        e(f"s_lshl_b32 s52, s{sW}, 14")
        return k.L

    def sp_loads(self, b):
        k = K(); e = k.e
        for v in range(16):
            e(f"v_xor_b32 v28, {((2*v) & 15) << 4}, v62")
            e(f"s_add_u32 s48, s{50 + (v >> 3)}, {(v & 7)*128*4096 + b*512}")
            e(f"s_add_u32 m0, s52, {R0 + v*1024}")
            e(f"buffer_load_dwordx4 v28, {srd(SWS)}, s48 offen lds", tag=f"sp{b}")
        return k.L
    def sp_move(self, b):
        k = K(); e = k.e
        e(f"@waitvm sp{b}")
        for ksl in range(8):
            for tl in range(2):
                e(f"ds_read_b128 {ar(((8*b+ksl)*2+tl)*4)}, v{12+(ksl&3)} offset:{R0 + tl*8192 + (ksl>>2)*256}", tag=f"spm{b}")
        e(f"@waitlg spm{b}")
        return k.L

    def z2_stats_publish(self):
        e = self.e
        Z = 128
        p = lambda a: f"v[{a}:{a+1}]"
        e(f"v_pk_add_f32 v[4:5], {p(Z)}, {p(Z+2)}\nv_pk_mul_f32 v[6:7], {p(Z)}, {p(Z)}\nv_pk_fma_f32 v[6:7], {p(Z+2)}, {p(Z+2)}, v[6:7]")
        for o in range(4, 24, 2): e(f"v_pk_add_f32 v[4:5], v[4:5], {p(Z+o)}\nv_pk_fma_f32 v[6:7], {p(Z+o)}, {p(Z+o)}, v[6:7]")
        e("v_add_f32 v4, v4, v5\nv_add_f32 v6, v6, v7")
        e("v_permlane16_swap_b32 v4, v6\nv_add_f32 v4, v4, v6\nv_mov_b32 v5, v4\nv_permlane32_swap_b32 v4, v5\nv_add_f32 v4, v4, v5")
        e(f"s_lshl_b32 s53, s{sP}, 2\ns_add_u32 s53, s53, s{sW}\ns_lshl_b32 s53, s53, 10\ns_add_u32 s53, s53, {WS_ST}")
        e(f"s_lshl_b32 s40, s{sC}, 7\ns_add_u32 s40, s40, s53\nv_lshlrev_b32 v5, 2, v{vL}")
        e("s_mov_b32 exec_hi, 0")
        e(f"buffer_store_dword v4, v5, {srd(SW)}, s40 offen sc1")
        e("s_mov_b64 exec, -1")

    def z2_finish(self):
        e = self.e
        Z = 128
        p = lambda a: f"v[{a}:{a+1}]"
        e(f"v_and_b32 v8, 31, v{vL}\nv_lshlrev_b32 v8, 2, v8\nv_lshrrev_b32 v9, 5, v{vL}\nv_lshl_add_u32 v8, v9, 9, v8")
        for j in range(4): e(f"buffer_load_dword v{4+j}, v8, {srd(SW)}, s53 offen offset:{128*j} sc1")
        e(f"s_bfe_u32 s40, s{sT1}, 0x10003\ns_lshl_b32 s40, s40, 5\nv_xor_b32 v16, s40, v31\nv_mul_u32_u24 v17, 192, v63\nv_add_u32 v16, v16, v17")
        e(f"s_mul_i32 s40, s{sC}, 192\ns_sub_u32 s40, {86*16}, s40\nv_mov_b32 v17, {OOB}")
        for P in range(3):
            e(f"v_add_u32 v18, {64*P}, v31\nv_cmp_gt_u32 vcc, s40, v18\nv_cndmask_b32 v{18+P+1}, v17, v16, vcc")
        e(f"s_mul_i32 s40, s{sC}, {2048*192}\ns_add_u32 s{sZ2}, s40, {WS_Z2}")
        e("v_add_f32 v4, v4, v5\nv_add_f32 v6, v6, v7\nv_add_f32 v4, v4, v6")
        e("v_mov_b32 v5, v4\nv_permlane32_swap_b32 v4, v5\nv_add_f32 v4, v4, v5\nv_mov_b32 v5, v4\nv_permlane16_swap_b32 v4, v5")
        e(f"v_mul_f32 v7, {fx(1/688)}, v4\nv_mul_f32 v5, {fx(1/688)}, v5\nv_fma_f32 v5, -v7, v7, v5\nv_max_f32 v5, 0, v5\nv_add_f32 v5, {fx(1e-5)}, v5\nv_rsq_f32 v6, v5")
        e("v_mul_f32 v7, v7, v6\nv_sub_f32 v7, 0, v7")
        for o in range(0, 24, 2): e(f"v_pk_fma_f32 {p(Z+o)}, {p(Z+o)}, v[6:7], v[6:7] op_sel:[0,0,1] op_sel_hi:[1,0,1]")
        for P in range(3):
            D = 160+4*P
            for j in range(4): e(f"v_cvt_pk_bf16_f32 v{D+j}, v{Z+8*P+2*j}, v{Z+8*P+2*j+1}")
            e(f"v_permlane16_swap_b32 v{D}, v{D+2}\nv_permlane16_swap_b32 v{D+1}, v{D+3}")
            e(f"buffer_store_dwordx4 {vr(D)}, v{19+P}, {srd(SW)}, s{sZ2} offen offset:{64*P} sc1")

    def d_setup(self):
        e = self.e
        e(f"s_mul_i32 s40, s{sKH}, 12288\ns_sub_u32 s40, s40, {R1}")
        for t in range(3):
            e(f"s_add_u32 s41, s40, {t*49152}\nv_add_u32 v{16+2*t}, s41, v58\nv_add_u32 v{17+2*t}, s41, v59")
        e(f"s_lshr_b32 s41, s{sW}, 1\ns_mul_i32 s55, s41, 6144\ns_mul_i32 s40, s{sKH}, {1024*192}\ns_add_u32 s54, s{sZ2}, s40\ns_add_u32 s54, s54, s55")
        e(f"s_mul_i32 s40, s{sKH}, 12288\ns_add_u32 s55, s55, s40")
        e(f"v_lshrrev_b32 v22, 3, v{vL}\nv_and_b32 v23, 7, v{vL}\nv_lshlrev_b32 v24, 1, v{vQ}\nv_xor_b32 v23, v23, v24\nv_lshlrev_b32 v23, 4, v23\nv_lshl_add_u32 v22, v22, 10, v23")
        e(f"v_bfe_u32 v23, v{vL}, 2, 2\nv_lshl_add_u32 v23, v{vQ}, 2, v23\nv_bfe_u32 v24, v23, 1, 2\nv_lshlrev_b32 v23, 7, v23\nv_and_b32 v25, 3, v{vL}\nv_lshl_add_u32 v23, v25, 3, v23")
        for dt in range(4): e(f"v_xor_b32 v25, {dt}, v24\nv_lshl_add_u32 v{48+dt}, v25, 5, v23")
        e(f"s_lshl_b32 s49, s{sW}, 13\ns_lshl_b32 s40, s{sC}, 7\ns_add_u32 s49, s49, s40\ns_lshl_b32 s59, s{sW}, 10")
    def slot(self, sg): return ((sg + 2) % NS) * 24576
    def z_dma(self, sg):
        k = K()
        for v in range(6):
            if v % 3 == 0: k.e(f"s_add_u32 s48, s54, {sg*12288 + v*1024}")
            k.e(f"s_add_u32 m0, s55, {self.slot(sg) + v*1024}")
            k.e(f"buffer_load_dwordx4 v{55+v%3}, {srd(SW)}, s48 offen sc1 lds", tag=f"z{sg}")
        return k.L
    def wo_dma(self, ns):
        k = K()
        for n in ns:
            k.e(f"s_add_u32 s48, s49, {n*32768}\ns_add_u32 m0, s59, {n*4096}")
            k.e(f"buffer_load_dwordx4 v22, {srd(SWO)}, s48 offen lds", tag="wo")
        return k.L
    def d_reads(self, sg):
        L = []; F = 112 + 48*(sg & 1)
        for kk in range(2):
            for ft in range(6):
                off = self.slot(sg) + kk*6144 + ft*32
                a = 16 + 2*(off // 49152) + (ft & 1); off %= 49152
                for h in range(2): L.append(f"ds_read_b64_tr_b16 v[{F+24*kk+4*ft+2*h}:{F+24*kk+4*ft+2*h+1}], v{a} offset:{off + h*768}")
        return L
    def d_loop(self):
        e = self.e
        for sg in range(NS): self.ext(self.z_dma(sg))
        e("@waitvm z0\ns_barrier")
        for x in self.d_reads(0): e(x)
        for sg in range(16):
            if sg < 15: e(f"@waitvm z{sg+1}")
            e("@waitlg\ns_barrier")
            F = 112 + 48*(sg & 1); main = K()
            for kk in range(2):
                for ft in range(6):
                    for tl in range(2):
                        A = 64 + 24*tl + 4*ft
                        main.e(f"v_mfma_f32_16x16x32_bf16 {vr(A)}, {vr(F+24*kk+4*ft)}, {ar(((2*sg+kk)*2+tl)*4)}, {'0' if sg+kk == 0 else vr(A)}")
            rd = [Ins(x) for x in self.d_reads(sg+1)] if sg < 15 else []
            if sg + NS < 16: dm = self.z_dma(sg+NS)
            elif 10 <= sg < 14: dm = self.wo_dma(range(6*(sg-10), min(22, 6*(sg-9))))
            else: dm = []
            out = []
            for n, m in enumerate(main.L):
                out.append(m)
                if rd: out.append(rd.pop(0))
                if n < 4 and rd: out.append(rd.pop(0))
                if dm and n >= 4: out.append(dm.pop(0))
            self.ext(out + rd + dm)
    def d_epilogue(self):
        e = self.e
        X = 4*24576
        e(f"s_mul_i32 s40, s{sW}, 6144\ns_add_u32 s40, s40, {X}\nv_lshl_add_u32 v23, v{vL}, 4, s40")
        e(f"s_xor_b32 s41, s{sW}, 1\ns_mul_i32 s41, s41, 6144\ns_add_u32 s41, s41, {X}\nv_lshl_add_u32 v24, v{vL}, 4, s41")
        for ft in range(6): e(f"ds_write_b128 v23, {vr(88+4*ft)} offset:{ft*1024}")
        e("v_mov_b32 v28, v29")
        p = lambda a: f"v[{a}:{a+1}]"
        for o in range(0, 24, 2): e(f"v_pk_add_f32 {p(64+o)}, {p(64+o)}, v[28:29]")
        e("@waitvm wo\n@waitlg\ns_barrier")
        for ft in range(6): e(f"ds_read_b128 {vr(88+4*ft)}, v24 offset:{ft*1024}")
        e(f"s_lshl_b32 s53, s{sP}, 2\ns_add_u32 s53, s53, s{sW}\ns_mul_i32 s53, s53, {24*1024}\ns_add_u32 s53, s53, {WS_U}")
        e(f"s_mul_i32 s40, s{sC}, 3072\ns_add_u32 s40, s40, s53\nv_lshlrev_b32 v23, 4, v{vL}")
        for o in range(0, 24, 2): e(f"v_pk_add_f32 {p(64+o)}, {p(64+o)}, {p(88+o)}")
        self.point("g", 64, 24)
        for o in range(0, 24, 2): e(f"v_pk_mul_f32 {p(64+o)}, {p(64+o)}, {p(208+o)}")
        for P in range(3):
            for j in range(4): e(f"v_cvt_pk_bf16_f32 v{112+4*P+j}, v{64+8*P+2*j}, v{64+8*P+2*j+1}")
            e(f"buffer_store_dwordx4 {vr(112+4*P)}, v23, {srd(SW)}, s40 offen offset:{1024*P} sc1")

    def e_preload(self):
        e = self.e
        for dt in range(4): e(f"v_add_u32 v{52+dt}, 65536, v{48+dt}")
        for P in range(22):
            for dt in range(4):
                for h in range(2):
                    off = P*4096 + h*2048
                    a = 48 + dt + 4*(off >> 16); off &= 65535
                    d = (P*4+dt)*4 + 2*h
                    reg = f"a[{d}:{d+1}]" if P < 16 else f"v[{160+d-256}:{161+d-256}]"
                    e(f"ds_read_b64_tr_b16 {reg}, v{a} offset:{off}")
        for r in range(16): e(f"v_lshlrev_b32 v{32+r}, 16, v{32+r}")
        e(f"v_lshl_add_u32 v24, v63, 10, v31\ns_lshl_b32 s46, s{sC}, 7")
    def e_main(self):
        e = self.e
        for P in range(22):
            if P % 4 == 0: e(f"s_add_u32 s40, s53, {P*1024}")
            e(f"buffer_load_dwordx4 {vr(64+4*P)}, v23, {srd(SW)}, s40 offen offset:{(P%4)*1024} sc1")
        e("@waitlg")
        for P in range(22):
            for dt in range(4):
                d = (P*4+dt)*4
                e(f"v_mfma_f32_16x16x32_bf16 {vr(32+4*dt)}, {ar(d) if P < 16 else vr(160+d-256)}, {vr(64+4*P)}, {vr(32+4*dt)}")
        for P in range(2):
            D = 4+4*P
            for j in range(4): e(f"v_cvt_pk_bf16_f32 v{D+j}, v{32+8*P+2*j}, v{32+8*P+2*j+1}")
            e(f"v_permlane16_swap_b32 v{D}, v{D+2}\nv_permlane16_swap_b32 v{D+1}, v{D+3}")
            e(f"buffer_store_dwordx4 {vr(D)}, v24, {srd(SO)}, s46 offen offset:{64*P}")

    def group_flags(self, base):
        e = self.e
        e(f"v_and_b32 v8, 7, v{vL}\nv_lshlrev_b32 v8, 7, v8")
        e(f"s_lshl_b32 s40, s{sP}, 10\ns_lshl_b32 s41, s{sW}, 2\ns_add_u32 s40, s40, s41\ns_add_u32 s40, s40, {base}")
        self.await_flags(8, 40, 1)

    def build(self):
        self.names = []
        e = self.e
        self.prologue()
        self.a_loads()
        self.epoch()
        self.code_prefetch()
        e(f"s_mul_i32 s{sCB}, s{sC}, 192\ns_mul_i32 s{sLW}, s{sW}, 3072")
        self.w_addr()
        self.ext(self.w_loads(1, range(7), "w2a"))
        self.a_consts()
        self.epoch2()
        self.stamp("A consts")
        self.a_gemm()
        self.xc_loads()
        self.a_stage1()
        self.publish(WS_F1, 2)
        e("s_barrier")
        self.ext(self.w_loads(1, [7], "w2b"))
        self.xc_unpack()
        e("@waitvm w2a w2b\ns_barrier")
        self.cs_compute(1)
        self.stamp("S1 wait")
        e(f"v_and_b32 v8, 15, v{vL}\nv_lshl_add_u32 v8, v{vQ}, 6, v8\nv_lshlrev_b32 v8, 7, v8")
        e(f"s_lshl_b32 s40, s{sW}, 11\ns_add_u32 s40, s40, {WS_F1}")
        self.await_flags(8, 40, 4)
        self.stamp("S1 done")
        self.stage2()
        for ks in range(16): e(f"ds_read_b128 {vr(64+4*ks)}, v{18+(ks&3)} offset:{R0+(ks>>2)*256}")
        self.point("hB", 64, 64)
        for j in range(4): e(f"v_mov_b32 v{232+j}, 0x3f803f80")
        e(f"s_lshl_b32 s{sPC}, s{sP}, 3\ns_add_u32 s{sPC}, s{sPC}, s{sC}\ns_lshl_b32 s{sCP}, s{sC}, 5\ns_add_u32 s{sCP}, s{sCP}, s{sP}")
        self.ext(self.cs_load(1, 208))
        self.ext(self.resid_reads())
        self.ext(self.row_consts())
        e("@waitlg\ns_barrier")
        self.ext(self.sp_loads(0))
        self.z_gemm(128, True, self.h_stats(), first_extra=95, per=3)
        self.stamp("z2 gemm")
        e("s_barrier")
        self.ext(self.sp_move(0)); self.ext(self.sp_loads(1))
        self.ext(self.w_loads(0, range(8), "w1"))
        self.gelu(128, 208)
        self.point("z2", 128, 24)
        self.z2_stats_publish()
        self.publish(WS_F2, sPC)
        self.stamp("S2 pub")
        self.ext(self.sp_move(1)); self.ext(self.sp_loads(2))
        self.group_flags(WS_F2)
        self.stamp("S2 done")
        self.z2_finish()
        self.publish(WS_F3, sCP)
        self.stamp("S3 pub")
        self.ext(self.sp_move(2)); self.ext(self.sp_loads(3))
        e("s_barrier")
        self.cs_compute(0, F=160, A=240)
        e("@waitvm cs0\ns_barrier")
        self.ext(self.cs_load(0, 232))
        self.z_gemm(208, False, [])
        self.gelu(208, 232)
        self.point("z1", 208, 24)
        self.ext(self.sp_move(3))
        self.d_setup()
        e("s_barrier")
        self.stamp("S3 wait")
        e(f"v_and_b32 v8, 31, v{vL}\nv_lshlrev_b32 v8, 7, v8\ns_lshl_b32 s40, s{sC}, 12\ns_add_u32 s40, s40, {WS_F3}")
        self.await_flags(8, 40, 4)
        self.stamp("S3 done")
        self.d_loop()
        self.stamp("D loop")
        self.d_epilogue()
        self.publish(WS_F4, sPC)
        self.e_preload()
        self.group_flags(WS_F4)
        self.stamp("S4 done")
        self.e_main()
        self.stamp("end")
        if not self.done: self.finish_epoch()
        return self.wrap()

    def wrap(self):
        k = self.k
        if self.stamps:
            k.e("s_waitcnt vmcnt(0) lgkmcnt(0)")
            k.e(f"s_lshl_b32 s40, s2, 2\ns_add_u32 s40, s40, s{sW}\ns_lshl_b32 s40, s40, 7\ns_add_u32 s40, s40, {WS_TS}")
            k.e("v_mov_b32 v3, 0\ns_mov_b64 exec, 1")
            for n in range(self.nst):
                k.e(f"v_mov_b32 v4, s{64+2*n}\nbuffer_store_dword v4, v3, {srd(SW)}, s40 offen offset:{4*n}")
        k.e("L_end:\ns_endpgm")
        hdr = open(f"cdna_kernels/{NAME}.s.ref").read().split("; Override launch")[0]
        s = hdr + f"; @launch grid=(256,1,1) block=(256,1,1) lds={LDS_SIZE}\n"
        s += '.amdgcn_target "amdgcn-amd-amdhsa--gfx950"\n.text\n'
        s += f".globl {NAME}_kernel\n.p2align 8\n.type {NAME}_kernel,@function\n{NAME}_kernel:\n"
        s += k.text()
        s += f".fill ({CODE_KB*1024} - (. - {NAME}_kernel)) / 4, 4, 0xbf800000\n"
        s += f'.section .rodata,"a"\n.p2align 6\n.amdhsa_kernel {NAME}_kernel\n'
        s += "  .amdhsa_next_free_vgpr 512\n  .amdhsa_next_free_sgpr 102\n  .amdhsa_accum_offset 256\n  .amdhsa_group_segment_fixed_size 0\n"
        s += "  .amdhsa_kernarg_size 104\n  .amdhsa_user_sgpr_count 2\n  .amdhsa_user_sgpr_kernarg_segment_ptr 1\n  .amdhsa_system_sgpr_workgroup_id_x 1\n"
        s += "  .amdhsa_float_denorm_mode_32 3\n  .amdhsa_float_denorm_mode_16_64 3\n.end_amdhsa_kernel\n"
        return s

if __name__ == "__main__":
    import argparse
    ap = argparse.ArgumentParser(); ap.add_argument("-o", default="k.s"); ap.add_argument("--stop"); ap.add_argument("--stamps", action="store_true")
    a = ap.parse_args()
    open(a.o, "w").write(Gen(stop=a.stop, stamps=a.stamps).build())
```
